```python
import torch

def _softmax(x, axis=-1):
    return torch.softmax(x, dim=axis)
def _gelu(x):
    return torch.nn.functional.gelu(x, approximate="tanh")
def _silu(x):
    return torch.nn.functional.silu(x)
def _sigmoid(x):
    return torch.sigmoid(x)
def _layernorm(x, axis=-1, eps=1e-5):
    m = x.mean(dim=axis, keepdim=True)
    v = x.var(dim=axis, keepdim=True, unbiased=False)
    return (x - m) / torch.sqrt(v + eps)
def _scatter_add(tgt, idx, src, axis=0):
    return tgt.clone().index_add_(axis, idx, src)
def _segment_sum(src, seg, n):
    out = torch.zeros((n,) + src.shape[1:], dtype=src.dtype)
    return out.index_add_(0, seg, src)
def _pad(x, pw):
    flat = tuple(v for pair in reversed(pw) for v in pair)
    return torch.nn.functional.pad(x, flat)

kernel_name = 'parallel_sum__mha_block__mixer_token_mlp__prompt'

def setup_inputs():

    _w = (lambda a: (lambda t: t.to(torch.bfloat16) if t.is_floating_point() else t)(torch.as_tensor(a)))
    def _A_setup():
        B, S, D, H = 1, 2048, 640, 32
        return {
            "x": _w((lambda *s: torch.randn(*s, dtype=torch.bfloat16) * 0.05)(B, S, D)),
            "wqkv": _w((lambda *s: torch.randn(*s, dtype=torch.bfloat16) * 0.05)(D, 3 * D)),
            "wo": _w((lambda *s: torch.randn(*s, dtype=torch.bfloat16) * 0.05)(D, D)),
        }
    _A_in = _A_setup()

    def _B_setup():
        B, S, D, F = 1, 2048, 640, 1536
        return {
            "x": _w((lambda *s: torch.randn(*s, dtype=torch.bfloat16) * 0.05)(B, S, D)),
            "w1": _w((lambda *s: torch.randn(*s, dtype=torch.bfloat16) * 1.6)(S, F) * (S ** -0.5)),
            "b1": _w((lambda *s: torch.randn(*s, dtype=torch.bfloat16) * 12.8)(F) * 0.02),
            "w2": _w((lambda *s: torch.randn(*s, dtype=torch.bfloat16) * 0.8)(F, S) * (F ** -0.5)),
            "b2": _w((lambda *s: torch.randn(*s, dtype=torch.bfloat16) * 12.8)(S) * 0.02),
        }
    _B_in = _B_setup()

    return {
        "A_x": _A_in["x"],
        "A_wqkv": _A_in["wqkv"],
        "A_wo": _A_in["wo"],
        "B_x": _B_in["x"],
        "B_w1": _B_in["w1"],
        "B_b1": _B_in["b1"],
        "B_w2": _B_in["w2"],
        "B_b2": _B_in["b2"],
    }

def reference(A_x, A_wqkv, A_wo, B_x, B_w1, B_b1, B_w2, B_b2):
    def _A_ref(x, wqkv, wo):
        B, S, D = x.shape
        H = 32
        Dh = D // H
        qkv = (lambda x, *d: x.permute(*d))((x @ wqkv).reshape(B, S, 3, H, Dh), 2, 0, 3, 1, 4)
        q, k, v = qkv[0], qkv[1], qkv[2]
        scores = torch.einsum("bhqd,bhkd->bhqk", q, k) * (Dh ** -0.5)
        p = _softmax(scores, axis=-1)
        o = torch.einsum("bhqk,bhkd->bhqd", p, v)
        return (lambda x, *d: x.permute(*d))(o, 0, 2, 1, 3).reshape(B, S, D) @ wo

    def _B_ref(x, w1, b1, w2, b2):
        B, S, D = x.shape
        h = _layernorm(x, axis=-1)
        u = torch.einsum("bsd,sf->bdf", h, w1) + b1
        u = _gelu(u)
        y = torch.einsum("bdf,fs->bds", u, w2) + b2
        return (lambda x, *d: x.permute(*d))(y, 0, 2, 1)

    x = A_x
    xn = _layernorm(x, axis=-1)
    return x + _A_ref(xn, A_wqkv, A_wo) + _B_ref(xn, B_w1, B_b1, B_w2, B_b2)
```

```python
import struct

S, D, H, DH, F = 2048, 640, 32, 20, 1536

WS_QF = 0x0000000
WS_KF = 0x0280000
WS_VF = 0x0500000
WS_HF = 0x0780000
WS_UF = 0x0A00000
WS_OF = 0x0C00000
WS_WOF = 0x0E80000
WS_YP = 0x0F80000
WS_CNT = 0x1200000
WS_SIZE = 0x1300000

HEAD_STRIDE = 32 * 2560
VHEAD_STRIDE = 128 * 640


def f2u(x):
    return struct.unpack("<I", struct.pack("<f", x))[0]


def hx(x):
    return "0x%x" % (x & 0xFFFFFFFF)


class Asm:
    def __init__(self):
        self.l = []

    def __call__(self, s=""):
        for line in s.split("\n"):
            line = line.strip()
            if line:
                self.l.append("    " + line)

    def label(self, n):
        self.l.append(n + ":")

    def raw(self, s):
        self.l.append(s)

    def comment(self, s):
        self.l.append("    ; " + s)

    def text(self):
        return "\n".join(self.l) + "\n"


def vr(b, n):
    return f"v[{b}:{b+n-1}]" if n > 1 else f"v{b}"


def ar(b, n):
    return f"a[{b}:{b+n-1}]" if n > 1 else f"a{b}"


def sr(b, n):
    return f"s[{b}:{b+n-1}]" if n > 1 else f"s{b}"


def srd(a, dst, base, nbytes):
    a(f"s_mov_b32 s{dst}, s{base}")
    a(f"s_and_b32 s{dst+1}, s{base+1}, 0xffff")
    a(f"s_mov_b32 s{dst+2}, {hx(nbytes)}")
    a(f"s_mov_b32 s{dst+3}, 0x00020000")


def kernel_header(a, name):
    a.raw(f".globl {name}")
    a.raw(".p2align 8")
    a.raw(f".type {name},@function")
    a.label(name)


def descriptor(name, nvgpr, accum, nsgpr=96):
    return f""".p2align 6
.amdhsa_kernel {name}
  .amdhsa_next_free_vgpr {nvgpr}
  .amdhsa_next_free_sgpr {nsgpr}
  .amdhsa_accum_offset {accum}
  .amdhsa_group_segment_fixed_size 0
  .amdhsa_kernarg_size 88
  .amdhsa_user_sgpr_count 2
  .amdhsa_user_sgpr_kernarg_segment_ptr 1
  .amdhsa_system_sgpr_workgroup_id_x 1
.end_amdhsa_kernel
"""
```

```python
from common import *
import math

QSCALE = (DH ** -0.5) * math.log2(math.e)
EPS = 1e-5
ST = 131072
K1_LDS = 163840

sX, sWq, sWs = 8, 12, 16
sW, sMI, sNJ, sWM, sWN = 22, 23, 24, 25, 26
sXo, sWo, sM0x, sC, sSlot = 27, 28, 29, 30, 31
sT0, sT1, sT2, sT3 = 32, 33, 34, 35
sOnes, sScale, sNWN = 36, 37, 38
sSt0, sSt1 = 39, 40

vXd, vWd = 10, 14
vA0, vAc, vT0, vT1 = 18, 19, 20, 21
vW0b, vW0, vW1 = 22, 24, 25
vSum, vSq, vCs = 26, 27, 28
vAd0, vAd1 = 30, 38
F = [48, 64]
ACC = 80
TMP = 144


def acc(a_, b_):
    return ACC + (a_ * 2 + b_) * 16


def reads(a, s, f):
    fb = F[f]
    if s == 0:
        a(f"v_xor_b32 v{vT1}, 0x1000, v{vAc}")
        a(f"ds_read_b128 {vr(fb,4)}, v{vAc}")
    else:
        a(f"v_xor_b32 v{vT0}, {hx(s<<5)}, v{vAc}")
        a(f"v_xor_b32 v{vT1}, {hx(0x1000|(s<<5))}, v{vAc}")
        a(f"ds_read_b128 {vr(fb,4)}, v{vT0}")
    a(f"ds_read_b64_tr_b16 {vr(fb+8,2)}, v{vW0} offset:{s*4096}")
    a(f"ds_read_b64_tr_b16 {vr(fb+10,2)}, v{vW0} offset:{s*4096+1024}")
    a(f"ds_read_b128 {vr(fb+4,4)}, v{vT1}")
    a(f"ds_read_b64_tr_b16 {vr(fb+12,2)}, v{vW1} offset:{s*4096}")
    a(f"ds_read_b64_tr_b16 {vr(fb+14,2)}, v{vW1} offset:{s*4096+1024}")


def dma_x(a, j):
    a(f"buffer_load_dwordx4 v{vXd+j}, {sr(sX,4)}, s{sXo} offen offset:{1024*j} lds")


def dma_w(a, j):
    a(f"buffer_load_dwordx4 v{vWd+j}, {sr(sWq,4)}, s{sWo} offen offset:{1024*j} lds")


def mfmas(a, f, vlay, extra):
    fb = F[f]
    order = [(0, 0), (0, 1), (1, 0), (1, 1)]
    for i, (x, w) in enumerate(order):
        xr, wr = vr(fb + 4 * x, 4), vr(fb + 8 + 4 * w, 4)
        d = vr(acc(x, w), 16)
        if vlay:
            a(f"v_mfma_f32_32x32x16_bf16 {d}, {xr}, {wr}, {d}")
        else:
            a(f"v_mfma_f32_32x32x16_bf16 {d}, {wr}, {xr}, {d}")
        a(f"v_dot2c_f32_bf16 v{vSum}, s{sOnes}, v{fb+i}")
        a(f"v_dot2c_f32_bf16 v{vSq}, v{fb+i}, v{fb+i}")
        a(f"v_dot2c_f32_bf16 v{vCs}, s{sOnes}, v{fb+8+i}")
        if extra[i]:
            extra[i]()


def gemm_loop(a, tag, vlay):
    def cond(fn):
        n = [0]

        def run():
            lab = f"k1_{tag}_skip{id(fn) % 100000}_{len(a.l)}"
            a(f"s_cbranch_vccz {lab}")
            fn()
            a.label(lab)
        return run

    a.label(f"k1_{tag}_loop")
    reads(a, 1, 1)
    a("s_waitcnt lgkmcnt(6)")
    mfmas(a, 0, vlay, [cond(lambda: (dma_x(a, 2), dma_x(a, 3), a(f"s_add_u32 m0, m0, 0x4000"))), None, None, None])
    reads(a, 2, 0)
    a("s_waitcnt lgkmcnt(6)")
    mfmas(a, 1, vlay, [cond(lambda: (dma_w(a, 0), dma_w(a, 1))), None, None, None])
    reads(a, 3, 1)
    a("s_waitcnt lgkmcnt(6)")
    mfmas(a, 0, vlay, [cond(lambda: (dma_w(a, 2), dma_w(a, 3))), None, None, None])
    a(f"s_cmp_eq_u32 s{sC}, 9")
    a(f"s_cbranch_scc1 k1_{tag}_last")
    a("s_waitcnt vmcnt(16) lgkmcnt(0)")
    a(f"s_cmp_lt_u32 s{sC}, 7")
    a(f"s_cbranch_scc1 k1_{tag}_bar")
    a("s_waitcnt vmcnt(8)")
    a(f"s_cmp_lt_u32 s{sC}, 8")
    a(f"s_cbranch_scc1 k1_{tag}_bar")
    a("s_waitcnt vmcnt(0)")
    a.label(f"k1_{tag}_bar")
    a("s_barrier")
    a(f"s_add_u32 m0, s{sSlot}, s{sM0x}")
    a(f"s_add_u32 s{sSlot}, s{sSlot}, 0x8000")
    a(f"s_and_b32 s{sSlot}, s{sSlot}, 0x1ffff")
    a(f"v_xor_b32 v{vAc}, s{sSlot}, v{vA0}")
    a(f"v_xor_b32 v{vW0}, s{sSlot}, v{vW0b}")
    a(f"v_xor_b32 v{vW1}, 0x100, v{vW0}")
    reads(a, 0, 0)
    a(f"s_add_u32 s{sXo}, s{sXo}, 128")
    a(f"s_add_u32 s{sWo}, s{sWo}, {64*3840}")
    a(f"s_cmp_lt_u32 s{sC}, 6")
    a(f"s_cselect_b64 vcc, -1, 0")
    a(f"s_add_u32 s{sC}, s{sC}, 1")
    mfmas(a, 1, vlay, [cond(lambda: (dma_x(a, 0), dma_x(a, 1))), None, None, None])
    a(f"s_branch k1_{tag}_loop")
    a.label(f"k1_{tag}_last")
    a("s_waitcnt lgkmcnt(0)")
    mfmas(a, 1, vlay, [None] * 4)


def halves_add(a, v, t):
    a(f"v_mov_b32 v{t}, v{v}")
    a("s_nop 1")
    a(f"v_permlane32_swap_b32 v{v}, v{t}")
    a("s_nop 1")
    a(f"v_add_f32 v{v}, v{v}, v{t}")


def row_stats(a):
    a("s_nop 2")
    halves_add(a, vSum, 2)
    halves_add(a, vSq, 2)
    a(f"v_mul_f32 v{vSum}, {hx(f2u(-1.0/D))}, v{vSum}")
    a(f"v_mul_f32 v{vSq}, {hx(f2u(1.0/D))}, v{vSq}")
    a(f"v_fma_f32 v3, -v{vSum}, v{vSum}, v{vSq}")
    a(f"v_max_f32 v3, 0, v3")
    a(f"v_add_f32 v2, {hx(f2u(EPS))}, v3")
    a(f"v_rsq_f32 v{vSq}, v2")
    a("s_nop 0")


def publish_stats(a):
    row_stats(a)
    halves_add(a, vCs, 2)
    a(f"v_mul_f32 v{vSq}, s{sScale}, v{vSq}")
    a(f"v_and_b32 v4, 31, v0")
    a(f"v_lshlrev_b32 v4, 2, v4")
    a(f"v_add_u32 v5, s{sSt0}, v4")
    a(f"v_add_u32 v6, s{sSt1}, v4")
    a(f"ds_write_b32 v5, v{vSum}")
    a(f"ds_write_b32 v5, v{vSq} offset:512")
    a(f"ds_write_b32 v6, v{vCs} offset:1024")
    a("s_waitcnt lgkmcnt(0)")
    a("s_barrier")


def gen_k1(a):
    kernel_header(a, "qkv_kernel")
    a("s_cmp_ge_u32 s2, 256")
    a("s_cbranch_scc1 k1_end")
    a("s_load_dwordx4 s[4:7], s[0:1], 0")
    a("s_load_dwordx2 s[20:21], s[0:1], 80")
    a("v_lshrrev_b32 v1, 6, v0")
    a("v_and_b32 v0, 63, v0")
    a(f"v_readfirstlane_b32 s{sW}, v1")
    a(f"s_and_b32 s{sT0}, s2, 7")
    a(f"s_lshr_b32 s{sT1}, s2, 3")
    a(f"s_lshr_b32 s{sMI}, s{sT0}, 1")
    a(f"s_lshl_b32 s{sMI}, s{sMI}, 2")
    a(f"s_lshr_b32 s{sT2}, s{sT1}, 3")
    a(f"s_add_u32 s{sMI}, s{sMI}, s{sT2}")
    a(f"s_and_b32 s{sNJ}, s{sT0}, 1")
    a(f"s_lshl_b32 s{sNJ}, s{sNJ}, 3")
    a(f"s_and_b32 s{sT2}, s{sT1}, 7")
    a(f"s_add_u32 s{sNJ}, s{sNJ}, s{sT2}")
    a(f"s_lshr_b32 s{sWM}, s{sW}, 1")
    a(f"s_and_b32 s{sWN}, s{sW}, 1")
    a("v_lshrrev_b32 v2, 3, v0")
    a("v_and_b32 v3, 7, v0")
    a("v_lshrrev_b32 v4, 4, v0")
    a("v_xor_b32 v3, v3, v4")
    a("v_lshlrev_b32 v3, 4, v3")
    a("v_mul_u32_u24 v2, 1280, v2")
    a(f"v_add_u32 v{vXd}, v2, v3")
    a(f"v_xor_b32 v3, 64, v3")
    a(f"v_add_u32 v{vXd+1}, v2, v3")
    a(f"v_add_u32 v{vXd+2}, {2*9216}, v{vXd}")
    a(f"v_add_u32 v{vXd+3}, {3*9216}, v{vXd+1}")
    a(f"v_add_u32 v{vXd+1}, 9216, v{vXd+1}")
    a(f"s_mul_i32 s{sXo}, s{sMI}, {128*1280}")
    a(f"s_mul_i32 s{sT0}, s{sW}, {32*1280}")
    a(f"s_add_u32 s{sXo}, s{sXo}, s{sT0}")
    a(f"s_lshl_b32 s{sM0x}, s{sW}, 12")
    a(f"s_mov_b32 s{sOnes}, 0x3f803f80")
    a("v_bfe_u32 v2, v0, 2, 2")
    a("v_mul_u32_u24 v2, 3840, v2")
    a("v_and_b32 v3, 3, v0")
    a("v_lshlrev_b32 v3, 4, v3")
    a("v_lshl_add_u32 v3, v4, 6, v3")
    a(f"v_add_u32 v{vWd}, v2, v3")
    for j in range(1, 4):
        a(f"v_add_u32 v{vWd+j}, {j*14336}, v{vWd}")
    a(f"s_lshl_b32 s{sWo}, s{sNJ}, 8")
    a(f"s_mul_i32 s{sT0}, s{sW}, {16*3840}")
    a(f"s_add_u32 s{sWo}, s{sWo}, s{sT0}")
    a("s_waitcnt lgkmcnt(0)")
    srd(a, sX, 4, S * D * 2)
    srd(a, sWq, 6, D * 3 * D * 2)
    srd(a, sWs, 20, WS_SIZE)
    a(f"v_mov_b32 v{vSum}, 0")
    a(f"v_mov_b32 v{vSq}, 0")
    a(f"v_mov_b32 v{vCs}, 0")
    a(f"s_cmp_eq_u32 s{sNJ}, 15")
    a("s_cbranch_scc1 k1_h")
    a(f"s_mov_b32 m0, s{sM0x}")
    a(f"s_mov_b32 s{sC}, 4")
    a.label("k1_pro")
    for j in range(4):
        dma_x(a, j)
    a("s_add_u32 m0, m0, 0x4000")
    a(f"s_add_u32 s{sXo}, s{sXo}, 128")
    for j in range(4):
        dma_w(a, j)
    a("s_add_u32 m0, m0, 0x4000")
    a(f"s_add_u32 s{sWo}, s{sWo}, {64*3840}")
    a(f"s_sub_u32 s{sC}, s{sC}, 1")
    a(f"s_cmp_lg_u32 s{sC}, 0")
    a("s_cbranch_scc1 k1_pro")
    a(f"s_sub_u32 s{sXo}, s{sXo}, 128")
    a(f"s_sub_u32 s{sWo}, s{sWo}, {64*3840}")
    a("v_and_b32 v1, 31, v0")
    a("v_lshrrev_b32 v2, 5, v0")
    a("v_bfe_u32 v3, v0, 1, 3")
    a("v_xor_b32 v3, v3, v2")
    a("v_lshlrev_b32 v3, 4, v3")
    a("v_lshl_add_u32 v3, v1, 7, v3")
    a(f"s_lshl_b32 s{sT0}, s{sWM}, 13")
    a(f"s_lshl_b32 s{sT1}, s{sWN}, 12")
    a(f"s_add_u32 s{sT0}, s{sT0}, s{sT1}")
    a(f"v_add_u32 v{vA0}, s{sT0}, v3")
    a(f"v_mov_b32 v{vAc}, v{vA0}")
    a("v_bfe_u32 v3, v0, 2, 2")
    a("v_lshlrev_b32 v3, 6, v3")
    a("v_lshl_add_u32 v3, v2, 11, v3")
    a("v_bfe_u32 v4, v0, 4, 1")
    a("v_lshl_add_u32 v3, v4, 5, v3")
    a("v_and_b32 v4, 3, v0")
    a("v_lshl_add_u32 v3, v4, 3, v3")
    a(f"s_lshl_b32 s{sT0}, s{sWN}, 1")
    a(f"s_add_u32 s{sT0}, s{sT0}, s{sWM}")
    a(f"s_lshl_b32 s{sT0}, s{sT0}, 8")
    a(f"s_add_u32 s{sT0}, s{sT0}, 0x4000")
    a(f"v_add_u32 v{vW0b}, s{sT0}, v3")
    a(f"v_mov_b32 v{vW0}, v{vW0b}")
    a(f"v_xor_b32 v{vW1}, 0x100, v{vW0b}")
    for i in range(64):
        a(f"v_mov_b32 v{ACC+i}, 0")
    a(f"s_xor_b32 s{sNWN}, s{sWN}, 1")
    a(f"s_lshl_b32 s{sT0}, s{sWM}, 8")
    a(f"s_lshl_b32 s{sT1}, s{sWN}, 7")
    a(f"s_add_u32 s{sSt0}, s{sT0}, s{sT1}")
    a(f"s_add_u32 s{sSt0}, s{sSt0}, {ST}")
    a(f"s_lshl_b32 s{sT0}, s{sWN}, 8")
    a(f"s_lshl_b32 s{sT1}, s{sWM}, 7")
    a(f"s_add_u32 s{sSt1}, s{sT0}, s{sT1}")
    a(f"s_add_u32 s{sSt1}, s{sSt1}, {ST}")
    a(f"s_mov_b32 s{sSlot}, 0")
    a(f"s_mov_b32 s{sC}, 0")
    a("s_mov_b64 vcc, 0")
    a(f"s_mov_b32 s{sScale}, 1.0")
    a(f"s_cmp_ge_u32 s{sNJ}, 10")
    a("s_cbranch_scc1 k1_v")

    a("v_and_b32 v3, 0x13, v1")
    a("v_bfe_u32 v4, v1, 2, 1")
    a("v_lshl_or_b32 v3, v4, 3, v3")
    a("v_bfe_u32 v4, v1, 3, 1")
    a("v_lshl_or_b32 v3, v4, 2, v3")
    a(f"s_cmp_lt_u32 s{sNJ}, 5")
    a(f"s_cselect_b32 s{sScale}, {hx(f2u(QSCALE))}, 1.0")
    a(f"s_cselect_b32 s{sT3}, {hx(WS_QF)}, {hx(WS_KF)}")
    a(f"s_cselect_b32 s{sT0}, 0, 5")
    a(f"s_cselect_b64 s[42:43], -1, 0")
    a(f"v_cndmask_b32 v3, v3, v1, s[42:43]")
    a("v_lshlrev_b32 v3, 4, v3")
    a(f"s_sub_u32 s{sT0}, s{sNJ}, s{sT0}")
    a(f"s_lshl_b32 s{sT0}, s{sT0}, 5")
    a(f"s_lshl_b32 s{sT1}, s{sWN}, 4")
    a(f"s_add_u32 s{sT0}, s{sT0}, s{sT1}")
    a(f"s_lshl_b32 s{sT1}, s{sMI}, 1")
    a(f"s_add_u32 s{sT1}, s{sT1}, s{sWM}")
    a(f"s_mul_i32 s{sT1}, s{sT1}, 2560")
    a(f"s_add_u32 s{sT3}, s{sT3}, s{sT1}")
    a(f"s_lshl_b32 s{sT1}, s{sWM}, 3")
    a(f"s_add_u32 s{sT1}, s{sT1}, s{sT0}")
    a(f"s_xor_b32 s{sT2}, s{sT1}, 8")
    a(f"s_mov_b32 s44, {HEAD_STRIDE}")
    a(f"s_movk_i32 s45, -254")
    a(f"s_movk_i32 s46, 1024")
    for b in range(2):
        for rq in range(4):
            k = b * 4 + rq
            a(f"v_add_u32 v4, s{sT1 if b == 0 else sT2}, v2")
            if rq:
                a(f"v_add_u32 v4, {2*rq}, v4")
            a("v_mul_u32_u24 v5, 205, v4")
            a("v_lshrrev_b32 v5, 10, v5")
            a("v_mad_i32_i24 v4, v5, -5, v4")
            a("v_mad_u32_u24 v5, v5, s44, v3")
            a("v_and_b32 v6, 1, v4")
            a("v_lshl_add_u32 v5, v6, 3, v5")
            a("v_and_b32 v6, 2, v4")
            a("v_lshl_add_u32 v5, v6, 8, v5")
            a("v_and_b32 v6, 4, v4")
            a("v_lshl_add_u32 v5, v6, 9, v5")
            a("v_mul_i32_i24 v6, s45, v6")
            a("v_add_u32 v6, s46, v6")
            a(f"v_mad_u32_u24 v{vAd0+k}, v6, s{sWN}, v5")
            a(f"v_mad_u32_u24 v{vAd1+k}, v6, s{sNWN}, v5")
    a("s_waitcnt vmcnt(24)")
    a("s_barrier")
    reads(a, 0, 0)
    gemm_loop(a, "qk", False)
    publish_stats(a)
    a(f"v_xor_b32 v5, 128, v5")
    a(f"ds_read_b32 v8, v5")
    a(f"ds_read_b32 v9, v5 offset:512")
    a("v_lshrrev_b32 v2, 5, v0")
    a("v_lshlrev_b32 v2, 4, v2")
    a(f"v_add_u32 v6, s{sSt1}, v2")
    a(f"v_xor_b32 v7, 128, v6")
    for b in range(2):
        for rq in range(4):
            a(f"ds_read_b128 {vr(TMP+(b*4+rq)*4,4)}, v{6+b} offset:{1024+32*rq}")
    a("s_waitcnt lgkmcnt(0)")
    for x in range(2):
        st = vSum if x == 0 else 8
        for b in range(2):
            for rq in range(4):
                r0 = acc(x, b) + rq * 4
                cs = TMP + (b * 4 + rq) * 4
                for p in range(2):
                    a(f"v_pk_fma_f32 {vr(r0+2*p,2)}, {vr(cs+2*p,2)}, {vr(st,2)}, {vr(r0+2*p,2)} op_sel_hi:[1,0,1]")
                for p in range(2):
                    a(f"v_pk_mul_f32 {vr(r0+2*p,2)}, {vr(r0+2*p,2)}, {vr(st,2)} op_sel:[0,1] op_sel_hi:[1,1]")
                a(f"v_cvt_pk_bf16_f32 v{r0}, v{r0}, v{r0+1}")
                a(f"v_cvt_pk_bf16_f32 v{r0+1}, v{r0+2}, v{r0+3}")
                ad = (vAd0 if x == 0 else vAd1) + b * 4 + rq
                a(f"buffer_store_dwordx2 {vr(r0,2)}, v{ad}, {sr(sWs,4)}, s{sT3} offen")
    a("s_endpgm")

    a.label("k1_v")
    a(f"s_sub_u32 s{sT0}, s{sNJ}, 10")
    a(f"s_lshl_b32 s{sT0}, s{sT0}, 7")
    a(f"s_lshl_b32 s{sT1}, s{sWN}, 6")
    a(f"s_add_u32 s{sT0}, s{sT0}, s{sT1}")
    a(f"s_lshl_b32 s{sT1}, s{sWM}, 5")
    a(f"s_add_u32 s{sT1}, s{sT1}, s{sT0}")
    a(f"s_xor_b32 s{sT2}, s{sT1}, 32")
    a(f"s_mov_b32 s44, {VHEAD_STRIDE}")
    a(f"s_movk_i32 s45, -20")
    a("v_mul_u32_u24 v3, 320, v2")
    for b in range(2):
        a(f"v_add_u32 v4, s{sT1 if b == 0 else sT2}, v1")
        a("v_mul_u32_u24 v5, 205, v4")
        a("v_lshrrev_b32 v5, 12, v5")
        a("v_mad_i32_i24 v4, v5, s45, v4")
        a("v_mad_u32_u24 v5, v5, s44, v3")
        a(f"v_lshl_add_u32 v{vAd0+b}, v4, 4, v5")
    a(f"s_lshl_b32 s{sT0}, s{sMI}, 3")
    a(f"s_lshl_b32 s{sT1}, s{sWM}, 2")
    a(f"s_add_u32 s{sT0}, s{sT0}, s{sT1}")
    a(f"s_mul_i32 s{sT0}, s{sT0}, 640")
    a(f"s_add_u32 s{sT0}, s{sT0}, {hx(WS_VF)}")
    a(f"s_mul_i32 s{sT1}, s{sWN}, 1280")
    a(f"s_add_u32 s{sT2}, s{sT0}, s{sT1}")
    a(f"s_mul_i32 s{sT1}, s{sNWN}, 1280")
    a(f"s_add_u32 s{sT3}, s{sT0}, s{sT1}")
    a("s_waitcnt vmcnt(24)")
    a("s_barrier")
    reads(a, 0, 0)
    gemm_loop(a, "v", True)
    publish_stats(a)
    a(f"v_xor_b32 v6, 128, v6")
    a(f"ds_read_b32 v29, v6 offset:1024")
    a("v_lshrrev_b32 v2, 5, v0")
    a("v_lshlrev_b32 v2, 4, v2")
    a(f"v_add_u32 v6, s{sSt0}, v2")
    a(f"v_xor_b32 v7, 128, v6")
    for x in range(2):
        for rq in range(4):
            a(f"ds_read_b128 {vr(TMP+x*32+rq*4,4)}, v{6+x} offset:{32*rq}")
            a(f"ds_read_b128 {vr(TMP+x*32+16+rq*4,4)}, v{6+x} offset:{512+32*rq}")
        a("s_waitcnt lgkmcnt(0)")
        for b in range(2):
            r0 = acc(x, b)
            sel = "op_sel_hi:[1,0,1]" if b == 0 else "op_sel:[0,1,0] op_sel_hi:[1,1,1]"
            for o in range(2):
                for p in range(4):
                    q = o * 8 + 2 * p
                    a(f"v_pk_fma_f32 {vr(r0+q,2)}, {vr(TMP+x*32+q,2)}, {vr(vCs,2)}, {vr(r0+q,2)} {sel}")
                for p in range(4):
                    q = o * 8 + 2 * p
                    a(f"v_pk_mul_f32 {vr(r0+q,2)}, {vr(r0+q,2)}, {vr(TMP+x*32+16+q,2)}")
                for p in range(4):
                    q = o * 8 + 2 * p
                    a(f"v_cvt_pk_bf16_f32 v{r0+o*8+p}, v{r0+q}, v{r0+q+1}")
                a(f"buffer_store_dwordx4 {vr(r0+o*8,4)}, v{vAd0+b}, {sr(sWs,4)}, s{sT2 if x == 0 else sT3} offen offset:{640*o}")
    a("s_endpgm")

    a.label("k1_h")
    a(f"s_mov_b32 m0, s{sM0x}")
    a(f"s_mov_b32 s{sC}, 10")
    a.label("k1_hpro")
    for j in range(4):
        dma_x(a, j)
    a("s_add_u32 m0, m0, 0x4000")
    a(f"s_add_u32 s{sXo}, s{sXo}, 128")
    a(f"s_sub_u32 s{sC}, s{sC}, 1")
    a(f"s_cmp_lg_u32 s{sC}, 0")
    a("s_cbranch_scc1 k1_hpro")
    a("v_and_b32 v1, 31, v0")
    a("v_lshrrev_b32 v2, 5, v0")
    a("v_bfe_u32 v3, v0, 1, 3")
    a("v_xor_b32 v3, v3, v2")
    a("v_lshlrev_b32 v3, 4, v3")
    a("v_lshl_add_u32 v3, v1, 7, v3")
    a(f"v_add_u32 v{vA0}, s{sM0x}, v3")
    a(f"v_mov_b32 v{vAc}, v{vA0}")
    a("v_lshlrev_b32 v4, 3, v2")
    a("v_sub_u32 v4, v1, v4")
    a("v_mov_b32 v6, 0x3f80")
    a("v_mov_b32 v7, 0x3f800000")
    for half in range(2):
        for p in range(4):
            t = 16 * half + 2 * p
            a(f"v_cmp_eq_u32 vcc, {t}, v4")
            a(f"v_cmp_eq_u32 s[42:43], {t+1}, v4")
            a("s_nop 1")
            a(f"v_cndmask_b32 v5, 0, v6, vcc")
            a(f"v_cndmask_b32 v{30+half*4+p}, v5, v7, s[42:43]")

    def rd4():
        for s in range(4):
            if s:
                a(f"v_xor_b32 v{vT0}, {hx(s<<5)}, v{vAc}")
            a(f"ds_read_b128 {vr(F[0]+4*s,4)}, v{vAc if s == 0 else vT0}")

    for part in range(2):
        a(f"s_waitcnt vmcnt({20 if part == 0 else 0})")
        a(f"s_mov_b32 s{sC}, 5")
        a.label(f"k1_hs{part}")
        rd4()
        a(f"v_add_u32 v{vAc}, 0x4000, v{vAc}")
        for s in range(4):
            a(f"s_waitcnt lgkmcnt({3-s})")
            for i in range(4):
                r = F[0] + 4 * s + i
                a(f"v_dot2c_f32_bf16 v{vSum}, s{sOnes}, v{r}")
                a(f"v_dot2c_f32_bf16 v{vSq}, v{r}, v{r}")
        a(f"s_sub_u32 s{sC}, s{sC}, 1")
        a(f"s_cmp_lg_u32 s{sC}, 0")
        a(f"s_cbranch_scc1 k1_hs{part}")
    row_stats(a)
    a(f"v_mul_f32 v4, v{vSq}, v{vSq}")
    a(f"v_mov_b32 v5, {hx(f2u(EPS))}")
    a(f"v_fma_f32 v4, v4, v3, v5")
    a("v_rsq_f32 v4, v4")
    a("s_nop 0")
    a(f"v_mul_f32 v{vSq}, v{vSq}, v4")
    a(f"v_mul_f32 v{vSum}, v{vSum}, v{vSq}")
    a("v_lshrrev_b32 v2, 5, v0")
    a("v_lshlrev_b32 v2, 4, v2")
    for r in range(16):
        off = 4 * ((r & 3) + 8 * (r >> 2))
        a(f"ds_bpermute_b32 v{TMP+r}, v2, v{vSq} offset:{off}")
        a(f"ds_bpermute_b32 v{TMP+16+r}, v2, v{vSum} offset:{off}")
        if r % 4 == 3:
            a("s_waitcnt lgkmcnt(0)")
    a(f"v_mov_b32 v{vAc}, v{vA0}")
    a(f"s_lshl_b32 s{sT0}, s{sMI}, 3")
    a(f"s_lshl_b32 s{sT1}, s{sW}, 1")
    a(f"s_add_u32 s{sT0}, s{sT0}, s{sT1}")
    a(f"s_lshl_b32 s{sT0}, s{sT0}, 10")
    a(f"s_add_u32 s{sT0}, s{sT0}, {hx(WS_HF)}")
    a("v_lshlrev_b32 v8, 4, v0")
    a(f"s_mov_b32 s{sC}, 10")
    a.label("k1_ht")
    rd4()
    a(f"v_add_u32 v{vAc}, 0x4000, v{vAc}")
    for cb in range(2):
        d = vr(ACC + 16 * cb, 16)
        a(f"s_waitcnt lgkmcnt({2 - 2*cb})")
        a(f"v_mfma_f32_32x32x16_bf16 {d}, {vr(F[0]+8*cb,4)}, v[30:33], 0")
        a(f"v_mfma_f32_32x32x16_bf16 {d}, {vr(F[0]+8*cb+4,4)}, v[34:37], {d}")
    a(f"s_add_u32 s{sT1}, s{sT0}, 0x20000")
    a("s_nop 7")
    for cb in range(2):
        r0 = ACC + 16 * cb
        if cb == 1:
            a("s_nop 1")
        for o in range(2):
            for p in range(4):
                q = o * 8 + 2 * p
                a(f"v_pk_fma_f32 {vr(r0+q,2)}, {vr(r0+q,2)}, {vr(TMP+q,2)}, {vr(TMP+16+q,2)}")
            for p in range(4):
                q = o * 8 + 2 * p
                a(f"v_cvt_pk_bf16_f32 v{r0+o*8+p}, v{r0+q}, v{r0+q+1}")
            a(f"buffer_store_dwordx4 {vr(r0+o*8,4)}, v8, {sr(sWs,4)}, s{sT0 if cb == 0 else sT1} offen offset:{1024*o}")
    a(f"s_add_u32 s{sT0}, s{sT0}, 0x40000")
    a(f"s_sub_u32 s{sC}, s{sC}, 1")
    a(f"s_cmp_lg_u32 s{sC}, 0")
    a("s_cbranch_scc1 k1_ht")
    a(f"s_cmp_lg_u32 s{sMI}, 0")
    a("s_cbranch_scc1 k1_end")
    a("v_lshlrev_b32 v2, 8, v0")
    a("v_mov_b32 v3, 0")
    a(f"s_mov_b32 s{sT0}, {hx(WS_CNT)}")
    a(f"buffer_store_dword v3, v2, {sr(sWs,4)}, s{sT0} offen")
    a.label("k1_end")
    a("s_endpgm")
    return descriptor("qkv_kernel", 208, 208)
```

```python
from common import *
import math

K2_LDS = 163840
GREG = 20480
L_AT = 81920
L_MX = 155648
L_CN = 159744

sWs = 8
sWv, sXcd, sSlot = 22, 23, 24
sT0, sT1, sT2, sT3 = 25, 26, 27, 28
sTgt = 29
sBnd = 68
sMV, sML = 30, 32


def lds_sync(a, cnt_off, tag, inc):
    a("s_waitcnt lgkmcnt(0)")
    a(f"v_mov_b32 v5, {L_CN + cnt_off}") if isinstance(cnt_off, int) else a(f"v_mov_b32 v5, s{cnt_off[0]}")
    a("v_mov_b32 v6, 1")
    a("s_mov_b64 exec, 1")
    a("ds_add_u32 v5, v6")
    a("s_mov_b64 exec, -1")
    a(f"s_add_u32 s{sTgt}, s{sTgt}, {inc}")
    a.label(f"{tag}_spin")
    a("ds_read_b32 v6, v5")
    a("s_waitcnt lgkmcnt(0)")
    a(f"v_readfirstlane_b32 s{sT0}, v6")
    a(f"s_cmp_ge_u32 s{sT0}, s{sTgt}")
    a(f"s_cbranch_scc1 {tag}_done")
    a("s_sleep 1")
    a(f"s_sub_u32 s{sBnd}, s{sBnd}, 1")
    a(f"s_cbranch_scc0 {tag}_spin")
    a.label(f"{tag}_done")


vK, vT, vV, vIdx = 1, 2, 3, 4
QM, QT = 8, 24
KM = [32, 36]
KT = [40, 42]
VB = [48, 56]
SB = [64, 80]
OB = 96
sK, sV, sIt, sHead, sQo, sKq, sQh, sPass, sK0, sV0, sCnt, sBad = 36, 37, 38, 39, 40, 41, 42, 43, 44, 45, 46, 47


def qk(a, q, kb, sb, part):
    d = vr(SB[sb], 16)
    if part == 0:
        a(f"v_mfma_f32_32x32x16_bf16 {d}, {vr(KM[kb],4)}, {vr(QM+4*q,4)}, 0")
    else:
        a(f"v_mfma_f32_32x32x8_bf16 {d}, {vr(KT[kb],2)}, {vr(QT+2*q,2)}, {d}")


def pv(a, q, vb, sb, o):
    a(f"v_smfmac_f32_32x32x32_bf16 {vr(OB+16*q,16)}, {vr(VB[vb]+4*o,4)}, {vr(SB[sb]+8*o,8)}, v{vIdx}")


def load_k(a, kb, imm_pair=0):
    a(f"s_mov_b64 exec, {sr(sML,2)}")
    a(f"buffer_load_dwordx2 {vr(KT[kb],2)}, v{vT}, {sr(sWs,4)}, s{sK} offen offset:{8*kb}")
    a("s_mov_b64 exec, -1")
    a(f"buffer_load_dwordx4 {vr(KM[kb],4)}, v{vK}, {sr(sWs,4)}, s{sK} offen offset:{1024*kb}")


def load_v(a, vb, imm):
    a(f"s_mov_b64 exec, {sr(sMV,2)}")
    a(f"buffer_load_dwordx4 {vr(VB[vb],4)}, v{vV}, {sr(sWs,4)}, s{sV} offen offset:{imm}")
    a(f"buffer_load_dwordx4 {vr(VB[vb]+4,4)}, v{vV}, {sr(sWs,4)}, s{sV} offen offset:{imm+640}")
    a("s_mov_b64 exec, -1")


def gen_attention(a):
    a.label("k2_attn")
    a(f"s_and_b32 s{sQh}, s{sWv}, 1")
    a(f"s_lshr_b32 s{sKq}, s{sWv}, 1")
    a(f"s_and_b32 s{sT0}, s{sSlot}, 3")
    a(f"s_lshl_b32 s{sHead}, s{sXcd}, 2")
    a(f"s_add_u32 s{sHead}, s{sHead}, s{sT0}")
    a(f"s_mul_i32 s{sT1}, s{sHead}, {HEAD_STRIDE}")
    a(f"s_lshr_b32 s{sT0}, s{sSlot}, 2")
    a(f"s_lshl_b32 s{sT0}, s{sT0}, 2")
    a(f"s_lshl_b32 s{sT2}, s{sQh}, 1")
    a(f"s_add_u32 s{sQo}, s{sT0}, s{sT2}")
    a(f"s_mul_i32 s{sT0}, s{sQo}, 2560")
    a(f"s_add_u32 s{sT3}, s{sT0}, s{sT1}")
    a(f"s_mul_i32 s{sT0}, s{sKq}, {8*2560}")
    a(f"s_add_u32 s{sT0}, s{sT0}, s{sT1}")
    a(f"s_add_u32 s{sK0}, s{sT0}, {hx(WS_KF)}")
    a(f"s_add_u32 s{sV0}, s{sT0}, {hx(WS_VF)}")
    a(f"s_mov_b32 s{sMV}, 0x000fffff")
    a(f"s_mov_b32 s{sMV+1}, 0x000fffff")
    a(f"s_mov_b32 s{sML}, -1")
    a(f"s_mov_b32 s{sML+1}, 0")
    a(f"v_lshlrev_b32 v{vK}, 4, v0")
    a("v_and_b32 v5, 31, v0")
    a(f"v_lshlrev_b32 v{vT}, 4, v5")
    a("v_lshrrev_b32 v6, 5, v0")
    a(f"v_mul_u32_u24 v{vV}, 320, v6")
    a(f"v_add_u32 v{vV}, v{vV}, v{vT}")
    a(f"v_add_u32 v{vT}, 2048, v{vT}")
    a(f"v_mov_b32 v{vIdx}, 0xdddddddd")
    for i in range(8):
        a(f"v_mov_b32 v{QT+i}, 0")
    a("v_cmp_eq_u32 vcc, 20, v5")
    a("v_mov_b32 v7, 0x3f803f80")
    a("v_mov_b32 v6, 0x3f80")
    a(f"v_cndmask_b32 v{VB[0]}, 0, v7, vcc")
    for i in range(1, 16):
        a(f"v_mov_b32 v{VB[0]+i}, v{VB[0]}")
    for kb in range(2):
        a(f"v_mov_b32 v{KT[kb]}, v7")
        a(f"v_mov_b32 v{KT[kb]+1}, v6")
    a("s_waitcnt lgkmcnt(0)")
    srd(a, sWs, 20, WS_SIZE)
    for j in range(4):
        a(f"s_add_u32 s{sT0}, s{sKq}, {j}")
        a(f"s_and_b32 s{sT0}, s{sT0}, 3")
        a(f"s_lshr_b32 s{sT1}, s{sT0}, 1")
        a(f"s_mul_i32 s{sT1}, s{sT1}, 2560")
        a(f"s_add_u32 s{sT1}, s{sT1}, s{sT3}")
        a(f"s_and_b32 s{sT0}, s{sT0}, 1")
        a(f"s_lshl_b32 s{sT2}, s{sT0}, 3")
        a(f"s_add_u32 s{sT2}, s{sT2}, s{sT1}")
        a(f"s_lshl_b32 s{sT0}, s{sT0}, 10")
        a(f"s_add_u32 s{sT1}, s{sT1}, s{sT0}")
        a(f"buffer_load_dwordx4 {vr(QM+4*j,4)}, v{vK}, {sr(sWs,4)}, s{sT1} offen")
        a(f"s_mov_b64 exec, {sr(sML,2)}")
        a(f"buffer_load_dwordx2 {vr(QT+2*j,2)}, v{vT}, {sr(sWs,4)}, s{sT2} offen")
        a("s_mov_b64 exec, -1")
    a(f"s_lshl_b32 s{sCnt}, s{sQh}, 2")
    a(f"s_add_u32 s{sCnt}, s{sCnt}, {L_CN}")
    a(f"s_add_u32 s{sBad}, s{sCnt}, 8")
    a(f"s_mov_b32 s{sPass}, 0")
    a(f"s_mov_b32 s{sTgt}, 0")
    a("s_barrier")
    a.label("k2_pass")
    a(f"s_mov_b32 s{sK}, s{sK0}")
    a(f"s_mov_b32 s{sV}, s{sV0}")
    load_k(a, 0)
    load_v(a, 0, 0)
    load_k(a, 1)
    a(f"s_add_u32 s{sK}, s{sK}, 2560")
    a(f"s_add_u32 s{sV}, s{sV}, 1280")
    for i in range(64):
        a(f"v_mov_b32 v{OB+i}, 0")
    for i in range(8, 16):
        a(f"v_mov_b32 v{SB[1]+i}, 0")
    a(f"s_mov_b32 s{sIt}, 7")
    a("s_mov_b64 vcc, -1")
    a("s_waitcnt vmcnt(4)")
    qk(a, 0, 0, 0, 0)
    qk(a, 0, 0, 0, 1)
    a("s_nop 7")
    a("s_nop 3")
    outl = []
    a.raw(".p2align 6")
    a.label("k2_aloop")
    for kb in range(2):
        for q in range(4):
            n = kb * 4 + q
            cur, nxt = n % 2, (n + 1) % 2
            e = [f"v_exp_f32 v{SB[cur]+i}, v{SB[cur]+i}" for i in range(16)]
            nq, nkb = (q + 1) % 4, (kb if q < 3 else 1 - kb)
            pq, pkb = (q + 3) % 4, (kb if q > 0 else 1 - kb)
            for x in e[0:2]:
                a(x)
            pv(a, pq, pkb, nxt, 1)
            if q == 0:
                if kb == 0:
                    load_v(a, 1, 0)
                else:
                    a(f"s_cbranch_vccz k2_skv")
                    load_v(a, 0, 1280)
                    a.label("k2_skv_b")
                    outl.append(("k2_skv", "k2_skv_b"))
            for x in e[2:5]:
                a(x)
            if q == 3:
                a("s_waitcnt vmcnt(2)")
            qk(a, nq, nkb, nxt, 0)
            for x in e[5:9]:
                a(x)
            qk(a, nq, nkb, nxt, 1)
            if q == 3:
                a(f"s_cbranch_vccz k2_skk{kb}")
                load_k(a, kb)
                a.label(f"k2_skk{kb}_b")
                outl.append((f"k2_skk{kb}", f"k2_skk{kb}_b"))
            for x in e[9:13]:
                a(x)
            if q == 0:
                a("s_waitcnt vmcnt(4)")
            pv(a, q, kb, cur, 0)
            if n == 7:
                a(f"s_add_u32 s{sK}, s{sK}, 2560")
                a(f"s_add_u32 s{sV}, s{sV}, 2560")
                a(f"s_cmp_gt_u32 s{sIt}, 1")
                a("s_cselect_b64 vcc, -1, 0")
                a(f"s_sub_u32 s{sIt}, s{sIt}, 1")
            for x in e[13:16]:
                a(x)
    a("s_cbranch_scc0 k2_aloop")
    a("s_nop 1")
    pv(a, 3, 1, 1, 1)
    for j in range(1, 4):
        a(f"s_add_u32 s{sT0}, s{sKq}, {j}")
        a(f"s_and_b32 s{sT0}, s{sT0}, 3")
        a(f"s_lshl_b32 s{sT0}, s{sT0}, 1")
        a(f"s_add_u32 s{sT0}, s{sT0}, s{sQh}")
        a(f"s_mul_i32 s{sT0}, s{sT0}, 9216")
        a(f"s_add_u32 s{sT0}, s{sT0}, {L_AT + (j-1)*3072}")
        a(f"v_add_u32 v5, s{sT0}, v{vK}")
        if j == 3:
            a("s_nop 3")
        for r in range(3):
            a(f"ds_write_b128 v5, {vr(OB+16*j+4*r,4)} offset:{1024*r}")
    lds_sync(a, [sCnt], "k2_sy1", 4)
    a(f"s_mul_i32 s{sT0}, s{sWv}, 9216")
    a(f"s_add_u32 s{sT0}, s{sT0}, {L_AT}")
    a(f"v_add_u32 v5, s{sT0}, v{vK}")
    R = 112
    for i in range(9):
        a(f"ds_read_b128 {vr(R+4*i,4)}, v5 offset:{1024*i}")
    a(f"s_lshl_b32 s{sT0}, s{sQo}, 1")
    a(f"s_add_u32 s{sT0}, s{sT0}, s{sKq}")
    a(f"s_mul_i32 s{sT0}, s{sT0}, {2*20*1024}")
    a(f"s_add_u32 s{sT0}, s{sT0}, {hx(WS_OF)}")
    a(f"s_lshl_b32 s{sT1}, s{sHead}, 9")
    a(f"s_add_u32 s{sT1}, s{sT1}, s{sT0}")
    a(f"s_lshr_b32 s{sT2}, s{sHead}, 1")
    a(f"s_lshl_b32 s{sT2}, s{sT2}, 8")
    a(f"s_and_b32 s{sT3}, s{sHead}, 1")
    a(f"s_lshl_b32 s{sT3}, s{sT3}, 3")
    a(f"s_add_u32 s{sT2}, s{sT2}, s{sT3}")
    a(f"s_add_u32 s{sT2}, s{sT2}, s{sT0}")
    a(f"s_add_u32 s{sT2}, s{sT2}, {16*1024}")
    a("v_bfe_u32 v6, v0, 4, 1")
    a("v_mul_u32_u24 v6, 20480, v6")
    a("v_and_b32 v7, 15, v0")
    a("v_lshl_add_u32 v6, v7, 4, v6")
    a("v_lshrrev_b32 v7, 5, v0")
    a("v_lshl_add_u32 v6, v7, 8, v6")
    for j in range(3):
        a(f"s_waitcnt lgkmcnt({6-3*j})")
        for p in range(6):
            a(f"v_pk_add_f32 {vr(OB+2*p,2)}, {vr(OB+2*p,2)}, {vr(R+12*j+2*p,2)}")
    a(f"v_mov_b32 v{R}, v{OB+8}")
    a(f"v_mov_b32 v{R+1}, v{OB+8}")
    a(f"v_mul_f32 v{R+2}, 0, v{OB}")
    a(f"v_fma_f32 v{R+2}, v{OB+1}, 0, v{R+2}")
    a(f"v_permlane32_swap_b32 v{R}, v{R+1}")
    for i in range(2, 12):
        a(f"v_fma_f32 v{R+2}, v{OB+i}, 0, v{R+2}")
    a(f"v_rcp_f32 v{R}, v{R+1}")
    a(f"v_add_f32 v{R+2}, v{R+2}, v{R+1}")
    a(f"v_cmp_nle_f32 vcc, {hx(f2u(2.0**-64))}, v{R+2}")
    a(f"v_mov_b32 v{R+3}, {hx(f2u(2.0**120))}")
    a(f"v_cmp_nle_f32 s[34:35], v{R+2}, v{R+3}")
    for p in range(6):
        a(f"v_pk_mul_f32 {vr(OB+2*p,2)}, {vr(OB+2*p,2)}, {vr(R,2)} op_sel_hi:[1,0]")
    for p in range(6):
        a(f"v_cvt_pk_bf16_f32 v{OB+p}, v{OB+2*p}, v{OB+2*p+1}")
    a(f"buffer_store_dwordx4 {vr(OB,4)}, v6, {sr(sWs,4)}, s{sT1} offen")
    a(f"s_mov_b64 exec, {sr(sML,2)}")
    a(f"buffer_store_dwordx2 {vr(OB+4,2)}, v6, {sr(sWs,4)}, s{sT2} offen")
    a("s_mov_b64 exec, -1")
    a(f"s_cmp_lg_u32 s{sPass}, 0")
    a("s_cbranch_scc1 k2_end")
    a("s_or_b64 vcc, vcc, s[34:35]")
    a("s_cbranch_vccz k2_ok")
    a(f"v_mov_b32 v5, s{sBad}")
    a(f"v_mov_b32 v6, 1")
    a("ds_write_b32 v5, v6")
    a.label("k2_ok")
    lds_sync(a, [sCnt], "k2_sy2", 4)
    a(f"v_mov_b32 v5, s{sBad}")
    a("ds_read_b32 v6, v5")
    a("s_waitcnt lgkmcnt(0)")
    a(f"v_readfirstlane_b32 s{sT0}, v6")
    a(f"s_cmp_eq_u32 s{sT0}, 0")
    a("s_cbranch_scc1 k2_end")
    MX = 112
    for q in range(4):
        a(f"v_mov_b32 v{MX+q}, 0xff800000")
    a(f"s_mov_b32 s{sK}, s{sK0}")
    a(f"s_mov_b32 s{sIt}, 8")
    a.label("k2_mx")
    load_k(a, 0)
    load_k(a, 1)
    a("s_waitcnt vmcnt(0)")
    for kb in range(2):
        for q in range(4):
            qk(a, q, kb, 0, 0)
            qk(a, q, kb, 0, 1)
            a("s_nop 7")
            a("s_nop 3")
            for i in range(8):
                a(f"v_max3_f32 v{MX+q}, v{SB[0]+2*i}, v{SB[0]+2*i+1}, v{MX+q}")
    a(f"s_add_u32 s{sK}, s{sK}, 2560")
    a(f"s_sub_u32 s{sIt}, s{sIt}, 1")
    a(f"s_cmp_lg_u32 s{sIt}, 0")
    a("s_cbranch_scc1 k2_mx")
    a("v_lshlrev_b32 v7, 2, v0")
    a("v_and_b32 v7, 127, v7")
    for j in range(4):
        a(f"v_mov_b32 v5, v{MX+j}")
        a("s_nop 1")
        a(f"v_permlane32_swap_b32 v{MX+j}, v5")
        a("s_nop 1")
        a(f"v_max_f32 v{MX+j}, v{MX+j}, v5")
        a(f"s_add_u32 s{sT0}, s{sKq}, {j}")
        a(f"s_and_b32 s{sT0}, s{sT0}, 3")
        a(f"s_lshl_b32 s{sT0}, s{sT0}, 9")
        a(f"s_lshl_b32 s{sT1}, s{sQh}, 11")
        a(f"s_add_u32 s{sT0}, s{sT0}, s{sT1}")
        a(f"s_add_u32 s{sT0}, s{sT0}, {L_MX}")
        a(f"v_add_u32 v{MX+4+j}, s{sT0}, v7")
        a(f"s_lshl_b32 s{sT1}, s{sKq}, 7")
        a(f"v_add_u32 v5, s{sT1}, v{MX+4+j}")
        a(f"ds_write_b32 v5, v{MX+j}")
    lds_sync(a, [sCnt], "k2_sy3", 4)
    a(f"s_mov_b32 s{sT1}, 0xffff0000")
    for j in range(4):
        for i in range(4):
            a(f"ds_read_b32 v{MX+8+i}, v{MX+4+j} offset:{128*i}")
        a("s_waitcnt lgkmcnt(0)")
        a(f"v_max3_f32 v5, v{MX+8}, v{MX+9}, v{MX+10}")
        a(f"v_max_f32 v5, v5, v{MX+11}")
        a("v_sub_f32 v5, 0, v5")
        a(f"v_and_b32 v6, s{sT1}, v5")
        a("v_sub_f32 v5, v5, v6")
        a(f"v_and_b32 v7, s{sT1}, v5")
        a("v_sub_f32 v5, v5, v7")
        a("v_lshrrev_b32 v6, 16, v6")
        a("v_or_b32 v6, v6, v7")
        a("v_lshrrev_b32 v5, 16, v5")
        a(f"s_not_b64 exec, {sr(sML,2)}")
        a(f"v_mov_b32 v{QT+2*j}, v6")
        a(f"v_mov_b32 v{QT+2*j+1}, v5")
        a("s_mov_b64 exec, -1")
    a(f"s_mov_b32 s{sPass}, 1")
    a("s_branch k2_pass")
    for lab, back in outl:
        a.label(lab)
        a("s_waitcnt vmcnt(0)")
        a(f"s_branch {back}")


sW1, sAux = 12, 16
sG, sH, sWo_, sM0, sFt, sDt = 36, 37, 38, 39, 40, 41
sU = 44
sD = 50
pW1, pB1, pW2, pB2, pWO = 56, 58, 60, 62, 64


def gen_wof(a):
    a(f"s_lshl_b32 s{sT0}, s2, 2")
    a(f"s_add_u32 s{sT0}, s{sT0}, s{sG}")
    a(f"s_mul_i32 s{sT1}, s{sT0}, 3277")
    a(f"s_lshr_b32 s{sT1}, s{sT1}, 16")
    a(f"s_mul_i32 s{sT2}, s{sT1}, 20")
    a(f"s_sub_u32 s{sT2}, s{sT0}, s{sT2}")
    a(f"s_lshl_b32 s66, s{sT0}, 10")
    a(f"s_add_u32 s66, s66, {hx(WS_WOF)}")
    a(f"s_cmp_lt_u32 s{sT0}, 800")
    a(f"s_cselect_b32 s66, s66, {hx(WS_SIZE)}")
    a("v_lshrrev_b32 v5, 4, v0")
    a("v_lshrrev_b32 v6, 1, v5")
    a("v_mul_u32_u24 v6, 20, v6")
    a("v_and_b32 v7, 1, v5")
    a("v_lshl_add_u32 v6, v7, 2, v6")
    a("v_mul_u32_u24 v5, 40, v5")
    a(f"s_cmp_lt_u32 s{sT2}, 16")
    a(f"s_cselect_b64 s[34:35], -1, 0")
    a(f"s_movk_i32 s{sT3}, {20*1280}")
    a(f"s_cselect_b32 s{sT3}, {8*1280}, s{sT3}")
    a(f"s_mul_i32 s{sT0}, s{sT2}, 40")
    a(f"s_mul_i32 s{sT2}, s{sT2}, 160")
    a(f"s_sub_u32 s{sT2}, s{sT2}, {16*160-16}")
    a(f"s_cmp_lg_u64 s[34:35], 0")
    a(f"s_cselect_b32 s{sT0}, s{sT0}, s{sT2}")
    a("v_cndmask_b32 v5, v5, v6, s[34:35]")
    a("v_mul_u32_u24 v5, 1280, v5")
    a("v_and_b32 v6, 15, v0")
    a("v_lshl_add_u32 v5, v6, 1, v5")
    a(f"s_mul_i32 s{sT0}, s{sT0}, 1280")
    a(f"s_lshl_b32 s{sT1}, s{sT1}, 5")
    a(f"s_add_u32 s{sT0}, s{sT0}, s{sT1}")
    a(f"s_add_u32 s{sT3}, s{sT3}, s{sT0}")
    srd(a, sAux, pWO, D * D * 2)
    for i in range(8):
        a(f"buffer_load_ushort v{156+i}, v5, {sr(sAux,4)}, s{sT0 if i < 4 else sT3} offen offset:{1280*(i&3)}")

    def store(nyounger):
        a(f"s_waitcnt vmcnt({nyounger})")
        for i in range(4):
            a(f"v_lshl_or_b32 v{164+i}, v{157+2*i}, 16, v{156+2*i}")
        a("v_lshlrev_b32 v5, 4, v0")
        a(f"buffer_store_dwordx4 v[164:167], v5, {sr(sWs,4)}, s66 offen")
    return store


def gelu(a, x, t):
    c = 2.0 * math.sqrt(2.0 / math.pi) * math.log2(math.e)
    a(f"v_mul_f32 v{t}, v{x}, v{x}")
    a(f"v_fmaak_f32 v{t}, v7, v{t}, {hx(f2u(-c))}")
    a(f"v_mul_f32 v{t}, v{t}, v{x}")


def gen_mixer1(a, fused):
    NR = 8
    ACC, HB, WF = 8, 72, 136
    vH0, vH1, vD0, vD1, vR0, vR1 = 1, 2, 3, 4, 152, 153
    B1 = 154
    a(f"s_mul_i32 s{sT0}, s{sSlot}, 43")
    a(f"s_lshr_b32 s{sDt}, s{sT0}, 7")
    a(f"s_mul_i32 s{sT0}, s{sDt}, 3")
    a(f"s_sub_u32 s{sT0}, s{sSlot}, s{sT0}")
    a(f"s_mul_i32 s{sFt}, s{sXcd}, 3")
    a(f"s_add_u32 s{sFt}, s{sFt}, s{sT0}")
    a(f"s_lshl_b32 s{sH}, s{sDt}, 18")
    a(f"s_lshl_b32 s{sT0}, s{sG}, 15")
    a(f"s_add_u32 s{sH}, s{sH}, s{sT0}")
    a(f"s_add_u32 s{sH}, s{sH}, {hx(WS_HF)}")
    a(f"s_mul_i32 s{sWo_}, s{sG}, {512*3072}")
    a(f"s_lshl_b32 s{sT0}, s{sFt}, 7")
    a(f"s_add_u32 s{sWo_}, s{sWo_}, s{sT0}")
    a(f"s_and_b32 s{sT0}, s{sG}, 1")
    a(f"s_lshl_b32 s{sT0}, s{sT0}, 17")
    a(f"v_lshl_add_u32 v{vH0}, v0, 4, s{sT0}")
    a(f"v_xor_b32 v{vH1}, 0x20000, v{vH0}")
    a("v_lshrrev_b32 v5, 5, v0")
    a("v_bfe_u32 v6, v0, 2, 2")
    a("v_lshl_add_u32 v7, v5, 2, v6")
    a("v_mul_u32_u24 v7, 3072, v7")
    a(f"v_bfe_u32 v{vD1}, v0, 4, 1")
    a(f"v_lshl_add_u32 v7, v{vD1}, 6, v7")
    a(f"v_and_b32 v{vD0}, 3, v0")
    a(f"v_lshlrev_b32 v{vR0}, 3, v{vD0}")
    a(f"v_lshl_add_u32 v{vD0}, v{vD0}, 4, v7")
    a(f"v_lshl_add_u32 v{vR0}, v{vD1}, 5, v{vR0}")
    a(f"v_lshl_add_u32 v{vR0}, v6, 6, v{vR0}")
    a(f"v_lshl_add_u32 v{vR0}, v5, 9, v{vR0}")
    a(f"v_add_u32 v{vD1}, {8*3072-1024}, v{vD0}")
    a(f"s_lshr_b32 s{sT0}, s{sG}, 1")
    a(f"s_lshl_b32 s{sT0}, s{sT0}, 8")
    a(f"s_add_u32 s{sT0}, s{sT0}, s{sM0}")
    a(f"v_add_u32 v{vR0}, s{sT0}, v{vR0}")
    a(f"v_xor_b32 v{vR1}, 0x100, v{vR0}")
    srd(a, sW1, pW1, S * F * 2)

    def issue(k):
        sl = k % NR
        a(f"s_add_u32 m0, s{sM0}, {sl*2048}")
        a(f"buffer_load_dwordx4 {vr(HB+8*sl,4)}, v{vH0}, {sr(sWs,4)}, s{sH} offen")
        a(f"buffer_load_dwordx4 v{vD0}, {sr(sW1,4)}, s{sWo_} offen lds")
        a(f"buffer_load_dwordx4 {vr(HB+8*sl+4,4)}, v{vH1}, {sr(sWs,4)}, s{sH} offen")
        a(f"buffer_load_dwordx4 v{vD1}, {sr(sW1,4)}, s{sWo_} offen offset:1024 lds")
        a(f"s_add_u32 s{sH}, s{sH}, 1024")
        a(f"s_add_u32 s{sWo_}, s{sWo_}, {16*3072}")

    def rd(k):
        sl, f = k % NR, WF + 8 * (k % 2)
        for x, vR in ((0, vR0), (1, vR1)):
            a(f"ds_read_b64_tr_b16 {vr(f+4*x,2)}, v{vR} offset:{sl*2048}")
            a(f"ds_read_b64_tr_b16 {vr(f+4*x+2,2)}, v{vR} offset:{sl*2048+1024}")

    def mm(k):
        sl, f = k % NR, WF + 8 * (k % 2)
        for x in range(2):
            for b in range(2):
                d = vr(ACC + (2 * x + b) * 16, 16)
                a(f"v_mfma_f32_32x32x16_bf16 {d}, {vr(f+4*x,4)}, {vr(HB+8*sl+4*b,4)}, {d}")

    store_wof = gen_wof(a)
    for k in range(NR):
        issue(k)
    for i in range(64):
        a(f"v_mov_b32 v{ACC+i}, 0")
    store_wof(4 * NR)
    srd(a, sAux, pB1, F * 2)
    a("v_lshrrev_b32 v5, 5, v0")
    a("v_lshlrev_b32 v5, 3, v5")
    a(f"s_lshr_b32 s{sT0}, s{sG}, 1")
    a(f"s_lshl_b32 s{sT0}, s{sT0}, 6")
    a(f"s_lshl_b32 s{sT1}, s{sFt}, 7")
    a(f"s_add_u32 s{sT0}, s{sT0}, s{sT1}")
    a("s_nop 0")
    for rq in range(4):
        a(f"buffer_load_dwordx2 {vr(B1+2*rq,2)}, v5, {sr(sAux,4)}, s{sT0} offen offset:{16*rq}")
    a(f"s_waitcnt vmcnt({4*(NR-1)})")
    rd(0)
    a(f"s_mov_b32 s{sT3}, 3")
    a.label("k2_m1loop")
    for k in range(NR):
        a(f"s_waitcnt vmcnt({4*(NR-2)})")
        rd(k + 1)
        a("s_waitcnt lgkmcnt(4)")
        mm(k)
        issue(k)
    a(f"s_sub_u32 s{sT3}, s{sT3}, 1")
    a(f"s_cmp_lg_u32 s{sT3}, 0")
    a("s_cbranch_scc1 k2_m1loop")
    for k in range(NR):
        if k < NR - 1:
            a(f"s_waitcnt vmcnt({4*(NR-2-k)})")
            rd(k + 1)
            a("s_waitcnt lgkmcnt(4)")
        else:
            a("s_waitcnt lgkmcnt(0)")
        mm(k)
    a(f"v_lshl_add_u32 v7, v0, 4, s{sM0}")
    a("s_nop 8")
    for j in range(1, 4):
        for r in range(4):
            a(f"ds_write_b128 v7, {vr(ACC+16*j+4*r,4)} offset:{(j-1)*4096+1024*r}")
    lds_sync(a, 16, "k2_sg1", 4)
    for j in range(1, 4):
        a(f"s_xor_b32 s{sT0}, s{sG}, {j}")
        a(f"s_mul_i32 s{sT0}, s{sT0}, {GREG}")
        a(f"v_lshl_add_u32 v7, v0, 4, s{sT0}")
        for r in range(4):
            a(f"ds_read_b128 {vr(ACC+16*j+4*r,4)}, v7 offset:{(j-1)*4096+1024*r}")
    c = 2.0 * math.sqrt(2.0 / math.pi) * math.log2(math.e)
    a(f"v_mov_b32 v7, {hx(f2u(-c*0.044715))}")
    for rq in range(4):
        for p in range(2):
            a(f"v_lshlrev_b32 v{HB+4*rq+2*p}, 16, v{B1+2*rq+p}")
            a(f"v_and_b32 v{HB+4*rq+2*p+1}, 0xffff0000, v{B1+2*rq+p}")
    for p in range(8):
        a(f"v_pk_add_f32 {vr(ACC+2*p,2)}, {vr(ACC+2*p,2)}, {vr(HB+2*p,2)}")
    for j in range(1, 4):
        a(f"s_waitcnt lgkmcnt({4*(3-j)})")
        for p in range(8):
            a(f"v_pk_add_f32 {vr(ACC+2*p,2)}, {vr(ACC+2*p,2)}, {vr(ACC+16*j+2*p,2)}")
    T = HB
    for i in range(16):
        gelu(a, ACC + i, T + i)
    for i in range(16):
        a(f"v_exp_f32 v{T+i}, v{T+i}")
    for i in range(16):
        a(f"v_add_f32 v{T+i}, 1.0, v{T+i}")
    for i in range(16):
        a(f"v_rcp_f32 v{T+i}, v{T+i}")
    for i in range(16):
        a(f"v_mul_f32 v{ACC+i}, v{ACC+i}, v{T+i}")
    for i in range(8):
        a(f"v_cvt_pk_bf16_f32 v{ACC+i}, v{ACC+2*i}, v{ACC+2*i+1}")
    a("v_bfe_u32 v5, v0, 4, 1")
    a("v_mul_u32_u24 v5, 49152, v5")
    a("v_lshrrev_b32 v6, 5, v0")
    a("v_lshl_add_u32 v5, v6, 8, v5")
    a("v_and_b32 v6, 15, v0")
    a("v_lshl_add_u32 v5, v6, 4, v5")
    a(f"s_lshl_b32 s{sT0}, s{sDt}, 1")
    a(f"s_and_b32 s{sT1}, s{sG}, 1")
    a(f"s_add_u32 s{sT0}, s{sT0}, s{sT1}")
    a(f"s_mul_i32 s{sT0}, s{sT0}, {2*48}")
    a(f"s_lshl_b32 s{sT1}, s{sFt}, 1")
    a(f"s_add_u32 s{sT0}, s{sT0}, s{sT1}")
    a(f"s_lshr_b32 s{sT1}, s{sG}, 1")
    a(f"s_add_u32 s{sT0}, s{sT0}, s{sT1}")
    a(f"s_lshl_b32 s{sT0}, s{sT0}, 10")
    a(f"s_add_u32 s{sT0}, s{sT0}, {hx(WS_UF)}")
    sc = " sc1" if fused else ""
    for o in range(2):
        a(f"buffer_store_dwordx4 {vr(ACC+4*o,4)}, v5, {sr(sWs,4)}, s{sT0} offen offset:{512*o}{sc}")


def gen_mixer2(a, fused, tag):
    NR = 3
    ACC, UB, WF = 8, 88, 148
    vU, vD, vR = 1, 2, 164
    vB2 = 3
    sSt, sD2 = sFt, sDt
    sc = " sc1" if fused else ""
    a(f"s_lshr_b32 s{sSt}, s{sXcd}, 1")
    a(f"s_lshl_b32 s{sSt}, s{sSt}, 3")
    a(f"s_and_b32 s{sT0}, s{sSlot}, 7")
    a(f"s_add_u32 s{sSt}, s{sSt}, s{sT0}")
    a(f"s_and_b32 s{sD2}, s{sXcd}, 1")
    a(f"s_lshl_b32 s{sD2}, s{sD2}, 2")
    a(f"s_lshr_b32 s{sT0}, s{sSlot}, 3")
    a(f"s_add_u32 s{sD2}, s{sD2}, s{sT0}")
    a(f"s_mul_i32 s{sU}, s{sD2}, {5*48*1024}")
    a(f"s_mul_i32 s{sT0}, s{sG}, {12*1024}")
    a(f"s_add_u32 s{sU}, s{sU}, s{sT0}")
    a(f"s_add_u32 s{sU}, s{sU}, {hx(WS_UF)}")
    for b in range(1, 5):
        a(f"s_add_u32 s{sU+b}, s{sU}, {b*49152}")
    a(f"s_mul_i32 s{sD}, s{sG}, {384*4096}")
    a(f"s_lshl_b32 s{sT0}, s{sSt}, 7")
    a(f"s_add_u32 s{sD}, s{sD}, s{sT0}")
    for j in range(1, 4):
        a(f"s_add_u32 s{sD+j}, s{sD}, {j*(8*4096-1024)}")
    a(f"v_lshlrev_b32 v{vU}, 4, v0")
    a("v_lshrrev_b32 v5, 5, v0")
    a("v_bfe_u32 v6, v0, 2, 2")
    a("v_lshl_add_u32 v7, v5, 2, v6")
    a("v_lshlrev_b32 v7, 12, v7")
    a(f"v_bfe_u32 v4, v0, 4, 1")
    a(f"v_lshl_add_u32 v7, v4, 6, v7")
    a(f"v_and_b32 v{vD}, 3, v0")
    a(f"v_lshlrev_b32 v{vR}, 3, v{vD}")
    a(f"v_lshlrev_b32 v{vR+1}, 1, v5")
    a(f"v_xor_b32 v{vD}, v{vD}, v{vR+1}")
    a(f"v_lshl_add_u32 v{vD}, v{vD}, 4, v7")
    a(f"v_lshl_add_u32 v{vR}, v6, 6, v{vR}")
    a(f"v_lshl_add_u32 v{vR}, v5, 11, v{vR}")
    a(f"v_lshl_add_u32 v{vR}, v4, 9, v{vR}")
    a(f"v_lshl_add_u32 v{vR}, v4, 5, v{vR}")
    a(f"s_lshr_b32 s{sT0}, s{sG}, 1")
    a(f"s_lshl_b32 s{sT0}, s{sT0}, 8")
    a(f"s_and_b32 s{sT1}, s{sG}, 1")
    a(f"s_lshl_b32 s{sT1}, s{sT1}, 5")
    a(f"s_add_u32 s{sT0}, s{sT0}, s{sT1}")
    a(f"v_xor_b32 v{vR}, s{sT0}, v{vR}")
    a(f"v_add_u32 v{vR}, s{sM0}, v{vR}")
    a(f"v_xor_b32 v{vR+1}, 32, v{vR}")
    a(f"v_xor_b32 v{vR+2}, 0x100, v{vR}")
    a(f"v_xor_b32 v{vR+3}, 0x120, v{vR}")
    srd(a, sW1, pW2, S * F * 2)
    srd(a, sAux, pB2, S * 2)
    a("v_and_b32 v4, 15, v0")
    a("v_lshlrev_b32 v5, 1, v4")
    a(f"s_lshl_b32 s{sT0}, s{sSt}, 2")
    a(f"s_add_u32 s{sT0}, s{sT0}, s{sG}")
    a(f"s_lshl_b32 s{sT1}, s{sT0}, 5")
    a(f"buffer_load_ushort v{vB2}, v5, {sr(sAux,4)}, s{sT1} offen")
    a(f"s_mul_i32 s{sH}, s{sT0}, {16*1280}")
    a(f"s_mul_i32 s{sT1}, s{sD2}, 160")
    a(f"s_add_u32 s{sH}, s{sH}, s{sT1}")
    a(f"s_add_u32 s{sH}, s{sH}, {hx(WS_YP)}")

    def issue_w(k):
        a(f"s_add_u32 m0, s{sM0}, {(k % NR)*4096}")
        a("s_nop 0")
        for j in range(4):
            a(f"buffer_load_dwordx4 v{vD}, {sr(sW1,4)}, s{sD+j} offen offset:{1024*j} lds")
        for j in range(4):
            a(f"s_add_u32 s{sD+j}, s{sD+j}, {32*4096}")

    def issue_u(k):
        for b in range(5):
            a(f"buffer_load_dwordx4 {vr(UB+20*(k % NR)+4*b,4)}, v{vU}, {sr(sWs,4)}, s{sU+b} offen{sc}")
        for b in range(5):
            a(f"s_add_u32 s{sU+b}, s{sU+b}, 1024")

    def step(k, wait, more):
        sl = k % NR
        a(f"s_waitcnt vmcnt({wait})")
        for j in range(4):
            a(f"ds_read_b64_tr_b16 {vr(WF+4*j,2)}, v{vR+j} offset:{sl*4096}")
            a(f"ds_read_b64_tr_b16 {vr(WF+4*j+2,2)}, v{vR+j} offset:{sl*4096+1024}")
        for j in range(4):
            a(f"s_waitcnt lgkmcnt({6-2*j})")
            for b in range(5):
                d = vr(ACC + (j * 5 + b) * 4, 4)
                a(f"v_mfma_f32_16x16x32_bf16 {d}, {vr(UB+20*sl+4*b,4)}, {vr(WF+4*j,4)}, {d}")
        if more:
            issue_w(k)
            issue_u(k)

    for k in range(NR):
        issue_w(k)
    for i in range(80):
        a(f"v_mov_b32 v{ACC+i}, 0")
    if fused:
        a(f"s_mul_i32 s{sT0}, s{sD2}, 5")
        a(f"s_add_u32 s{sT1}, s{sT0}, 4")
        a(f"s_lshr_b32 s{sT0}, s{sT0}, 2")
        a(f"s_lshr_b32 s{sT1}, s{sT1}, 2")
        a(f"s_lshl_b32 s{sT0}, s{sT0}, 8")
        a(f"s_lshl_b32 s{sT1}, s{sT1}, 8")
        a(f"s_add_u32 s{sT0}, s{sT0}, {hx(WS_CNT)}")
        a(f"s_add_u32 s{sT1}, s{sT1}, {hx(WS_CNT)}")
        a.label(f"{tag}_poll")
        a(f"buffer_load_dword v5, off, {sr(sWs,4)}, s{sT0} sc1")
        a(f"buffer_load_dword v6, off, {sr(sWs,4)}, s{sT1} sc1")
        a("s_waitcnt vmcnt(0)")
        a("v_min_u32 v5, v5, v6")
        a("s_nop 0")
        a(f"v_readfirstlane_b32 s{sT2}, v5")
        a(f"s_cmp_ge_u32 s{sT2}, 24")
        a(f"s_cbranch_scc1 {tag}_go")
        a("s_sleep 8")
        a(f"s_sub_u32 s{sBnd}, s{sBnd}, 1")
        a(f"s_cbranch_scc0 {tag}_poll")
        a.label(f"{tag}_go")
    for k in range(NR):
        issue_u(k)
    step(0, 10, True)
    step(1, 5 + 9, True)
    step(2, 18, True)
    a(f"s_mov_b32 s{sT3}, 2")
    a.label(f"{tag}_loop")
    for k in range(NR):
        step(k, 18, True)
    a(f"s_sub_u32 s{sT3}, s{sT3}, 1")
    a(f"s_cmp_lg_u32 s{sT3}, 0")
    a(f"s_cbranch_scc1 {tag}_loop")
    step(0, 18, False)
    step(1, 9, False)
    step(2, 0, False)
    a(f"v_add_u32 v7, s{sM0}, v{vU}")
    a("s_nop 4")
    for j in range(1, 4):
        if j == 3:
            a("s_nop 3")
        for b in range(5):
            a(f"ds_write_b128 v7, {vr(ACC+(j*5+b)*4,4)} offset:{(j-1)*5120+1024*b}")
    lds_sync(a, 16, f"{tag}_sg", 4)
    for j in range(1, 4):
        a(f"s_xor_b32 s{sT0}, s{sG}, {j}")
        a(f"s_mul_i32 s{sT0}, s{sT0}, {GREG}")
        a(f"v_add_u32 v7, s{sT0}, v{vU}")
        for b in range(5):
            a(f"ds_read_b128 {vr(ACC+(j*5+b)*4,4)}, v7 offset:{(j-1)*5120+1024*b}")
    a(f"v_lshlrev_b32 v{vB2+1}, 16, v{vB2}")
    a("v_and_b32 v5, 15, v0")
    a("v_mul_u32_u24 v5, 1280, v5")
    a("v_lshrrev_b32 v6, 4, v0")
    a("v_lshl_add_u32 v5, v6, 3, v5")
    for p in range(10):
        a(f"v_pk_add_f32 {vr(ACC+2*p,2)}, {vr(ACC+2*p,2)}, v[4:5] op_sel_hi:[1,0]")
    for j in range(1, 4):
        a(f"s_waitcnt lgkmcnt({5*(3-j)})")
        for p in range(10):
            a(f"v_pk_add_f32 {vr(ACC+2*p,2)}, {vr(ACC+2*p,2)}, {vr(ACC+20*j+2*p,2)}")
    for b in range(5):
        a(f"v_cvt_pk_bf16_f32 v{ACC+4*b}, v{ACC+4*b}, v{ACC+4*b+1}")
        a(f"v_cvt_pk_bf16_f32 v{ACC+4*b+1}, v{ACC+4*b+2}, v{ACC+4*b+3}")
        a(f"buffer_store_dwordx2 {vr(ACC+4*b,2)}, v5, {sr(sWs,4)}, s{sH} offen offset:{32*b}")


def common_prologue(a, endlab):
    a("s_cmp_ge_u32 s2, 256")
    a(f"s_cbranch_scc1 {endlab}")
    a("s_load_dwordx2 s[20:21], s[0:1], 80")
    a(f"s_load_dwordx8 s[{pW1}:{pW1+7}], s[0:1], 32")
    a(f"s_load_dwordx2 s[{pWO}:{pWO+1}], s[0:1], 16")
    a("v_lshrrev_b32 v1, 6, v0")
    a("v_and_b32 v0, 63, v0")
    a(f"v_readfirstlane_b32 s{sWv}, v1")
    a(f"s_and_b32 s{sXcd}, s2, 7")
    a(f"s_lshr_b32 s{sSlot}, s2, 3")
    a(f"s_mov_b32 s{sBnd}, 0x100000")
    a(f"v_lshlrev_b32 v5, 2, v0")
    a(f"v_add_u32 v5, {L_CN}, v5")
    a("v_mov_b32 v6, 0")
    a("ds_write_b32 v5, v6")


def gen_k2(a, fused):
    kernel_header(a, "attn_kernel")
    common_prologue(a, "k2_end")
    a(f"s_cmp_lt_u32 s{sWv}, 8")
    a("s_cbranch_scc1 k2_attn")
    a(f"s_sub_u32 s{sG}, s{sWv}, 8")
    a(f"s_mul_i32 s{sM0}, s{sG}, {GREG}")
    a(f"s_mov_b32 s{sTgt}, 0")
    a("s_waitcnt lgkmcnt(0)")
    srd(a, sWs, 20, WS_SIZE)
    a("s_barrier")
    a(f"s_cmp_lt_u32 s{sSlot}, 30")
    a("s_cbranch_scc1 k2_m1")
    st = gen_wof(a)
    st(0)
    a("s_branch k2_m2")
    a.label("k2_m1")
    gen_mixer1(a, fused)
    if fused:
        a("s_waitcnt vmcnt(0)")
        lds_sync(a, 16, "k2_sgp", 4)
        a(f"s_cmp_lg_u32 s{sG}, 0")
        a("s_cbranch_scc1 k2_m2")
        a(f"s_lshl_b32 s{sT0}, s{sDt}, 8")
        a(f"s_add_u32 s{sT0}, s{sT0}, {hx(WS_CNT)}")
        a("v_mov_b32 v5, 1")
        a("s_mov_b64 exec, 1")
        a(f"buffer_atomic_add v5, off, {sr(sWs,4)}, s{sT0}")
        a("s_mov_b64 exec, -1")
    a.label("k2_m2")
    if fused:
        gen_mixer2(a, True, "k2_m2")
    a.label("k2_end")
    a("s_endpgm")
    gen_attention(a)
    return descriptor("attn_kernel", 168, 168)


def gen_mixer2_kernel(a):
    kernel_header(a, "mixb_kernel")
    common_prologue(a, "km_end")
    a(f"s_mov_b32 s{sG}, s{sWv}")
    a(f"s_mul_i32 s{sM0}, s{sG}, {GREG}")
    a(f"s_mov_b32 s{sTgt}, 0")
    a("s_waitcnt lgkmcnt(0)")
    srd(a, sWs, 20, WS_SIZE)
    a("s_barrier")
    gen_mixer2(a, False, "km")
    a.label("km_end")
    a("s_endpgm")
    return descriptor("mixb_kernel", 168, 168)
```

```python
from common import *

PITCH = 336
K3_LDS = 4 * 64 * PITCH

def gen_k3(a):
    sWs, sX, sOut = 8, 12, 16
    sG, sSt, sD2, sT0, sT1, sO, sWf = 22, 23, 24, 25, 26, 27, 28
    kernel_header(a, "outp_kernel")
    a("s_cmp_ge_u32 s2, 256")
    a("s_cbranch_scc1 k3_end")
    a("s_load_dwordx2 s[20:21], s[0:1], 80")
    a("s_load_dwordx2 s[4:5], s[0:1], 0")
    a("s_load_dwordx2 s[6:7], s[0:1], 64")
    a("v_lshrrev_b32 v1, 6, v0")
    a("v_and_b32 v2, 63, v0")
    a(f"v_readfirstlane_b32 s{sG}, v1")
    a(f"s_bfe_u32 s{sSt}, s2, 0x20001")
    a(f"s_lshl_b32 s{sSt}, s{sSt}, 3")
    a(f"s_bfe_u32 s{sT0}, s2, 0x30003")
    a(f"s_add_u32 s{sSt}, s{sSt}, s{sT0}")
    a(f"s_and_b32 s{sD2}, s2, 1")
    a(f"s_lshl_b32 s{sD2}, s{sD2}, 2")
    a(f"s_lshr_b32 s{sT0}, s2, 6")
    a(f"s_add_u32 s{sD2}, s{sD2}, s{sT0}")
    a(f"s_mul_i32 s{sT0}, s{sG}, {5*1024}")
    a(f"s_mul_i32 s{sO}, s{sSt}, {4*20*1024}")
    a(f"s_add_u32 s{sO}, s{sO}, s{sT0}")
    a(f"s_add_u32 s{sO}, s{sO}, {hx(WS_OF)}")
    a(f"s_mul_i32 s{sWf}, s{sD2}, {5*20*1024}")
    a(f"s_add_u32 s{sWf}, s{sWf}, s{sT0}")
    a(f"s_add_u32 s{sWf}, s{sWf}, {hx(WS_WOF)}")
    a("v_lshlrev_b32 v2, 4, v2")
    for b in range(1, 5):
        a(f"v_add_u32 v{2+b}, {b*20480}, v2")
    a("s_waitcnt lgkmcnt(0)")
    srd(a, sWs, 20, WS_SIZE)
    FR = 40
    for k in range(5):
        imm = 1024 * k if k < 4 else 0
        if k == 4:
            a(f"s_add_u32 s{sO}, s{sO}, 4096")
            a(f"s_add_u32 s{sWf}, s{sWf}, 4096")
        for j in range(4):
            a(f"buffer_load_dwordx4 {vr(FR+36*k+20+4*j,4)}, v{2+j}, {sr(sWs,4)}, s{sO} offen offset:{imm}")
            a(f"buffer_load_dwordx4 {vr(FR+36*k+4*j,4)}, v{2+j}, {sr(sWs,4)}, s{sWf} offen offset:{imm}")
        a(f"buffer_load_dwordx4 {vr(FR+36*k+16,4)}, v6, {sr(sWs,4)}, s{sWf} offen offset:{imm}")
    srd(a, sX, 4, S * D * 2)
    srd(a, sOut, 6, S * D * 2)
    a(f"s_mul_i32 s{sT0}, s{sSt}, {64*1280}")
    a(f"s_mul_i32 s{sT1}, s{sD2}, 160")
    a(f"s_add_u32 s{sT0}, s{sT0}, s{sT1}")
    a(f"s_add_u32 s{sT1}, s{sT0}, {hx(WS_YP)}")
    a("s_movk_i32 s30, 1280")
    a(f"s_movk_i32 s31, {PITCH}")
    for i in range(3):
        a(f"v_add_u32 v7, {256*i}, v0")
        a("v_mul_u32_u24 v8, 6554, v7")
        a("v_lshrrev_b32 v8, 16, v8")
        a("v_mad_i32_i24 v7, v8, -10, v7")
        a(f"v_lshlrev_b32 v9, 4, v7")
        a(f"v_mad_u32_u24 v{10+i}, v8, s30, v9")
        a(f"v_lshlrev_b32 v9, 5, v7")
        a(f"v_mad_u32_u24 v{13+i}, v8, s31, v9")
    a("v_cmp_gt_u32 vcc, 128, v0")
    a("v_mov_b32 v7, 0x7f000000")
    a("v_and_b32 v9, 63, v0")
    a("v_cndmask_b32 v12, v7, v12, vcc")
    a("v_cndmask_b32 v15, v13, v15, vcc")
    for i in range(3):
        a(f"buffer_load_dwordx4 {vr(16+8*i,4)}, v{10+i}, {sr(sX,4)}, s{sT0} offen")
        a(f"buffer_load_dwordx4 {vr(20+8*i,4)}, v{10+i}, {sr(sWs,4)}, s{sT1} offen")
    a("v_and_b32 v7, 15, v9")
    a("v_lshrrev_b32 v8, 4, v9")
    a("v_lshlrev_b32 v8, 4, v8")
    a(f"v_mad_u32_u24 v8, v7, s31, v8")
    a(f"s_mul_i32 s{sT1}, s{sG}, {64*PITCH}")
    a(f"v_add_u32 v8, s{sT1}, v8")
    for k in range(5):
        a(f"s_waitcnt vmcnt({9*(4-k)+6})")
        for j in range(4):
            for b in range(5):
                d = ar((j*5+b)*4, 4)
                c = "0" if k == 0 else d
                a(f"v_mfma_f32_16x16x32_bf16 {d}, {vr(FR+36*k+4*b,4)}, {vr(FR+36*k+20+4*j,4)}, {c}")
    for j in range(4):
        if j == 3:
            a("s_nop 1")
        for b in range(5):
            a(f"ds_write_b128 v8, {ar((j*5+b)*4,4)} offset:{j*16*PITCH+64*b}")
    a("s_waitcnt lgkmcnt(0)")
    a("s_barrier")
    R = 40
    for i in range(3):
        for w in range(4):
            for h in range(2):
                a(f"ds_read_b128 {vr(R+32*i+8*w+4*h,4)}, v{13+i} offset:{w*64*PITCH+16*h}")
        if i == 0:
            a("s_waitcnt vmcnt(0)")
        else:
            a("s_waitcnt lgkmcnt(8)")
            fin(a, i - 1, R, sOut, sT0)
    a("s_waitcnt lgkmcnt(0)")
    fin(a, 2, R, sOut, sT0)
    a.label("k3_end")
    a("s_endpgm")
    return descriptor("outp_kernel", 220 + 80, 220)

def fin(a, i, R, sOut, sT0):
    r = R + 32 * i
    for w in range(1, 4):
        for p in range(4):
            a(f"v_pk_add_f32 {vr(r+2*p,2)}, {vr(r+2*p,2)}, {vr(r+8*w+2*p,2)}")
    for src in (16 + 8 * i, 20 + 8 * i):
        for p in range(4):
            a(f"v_lshlrev_b32 v{r+8+2*p}, 16, v{src+p}")
            a(f"v_and_b32 v{r+9+2*p}, 0xffff0000, v{src+p}")
        for p in range(4):
            a(f"v_pk_add_f32 {vr(r+2*p,2)}, {vr(r+2*p,2)}, {vr(r+8+2*p,2)}")
    for p in range(4):
        a(f"v_cvt_pk_bf16_f32 v{r+p}, v{r+2*p}, v{r+2*p+1}")
    a(f"buffer_store_dwordx4 {vr(r,4)}, v{10+i}, {sr(sOut,4)}, s{sT0} offen")
```

```python
import sys, os
sys.path.insert(0, os.path.dirname(__file__))
from common import *
import k1

HEAD = """; parallel_sum(mha_block, mixer_token_mlp): out = x + MHA(LN(x)) + TokenMixer(LN(x))
"""

def build(which, path):
    a = Asm()
    launches = []
    descs = []
    if "1" in which:
        descs.append(k1.gen_k1(a)); launches.append(("qkv_kernel", 256, 256, k1.K1_LDS))
    if "2" in which:
        import k2
        descs.append(k2.gen_k2(a, fused=("f" in which))); launches.append(("attn_kernel", 256, 768, k2.K2_LDS))
    if "m" in which:
        import k2
        descs.append(k2.gen_mixer2_kernel(a)); launches.append(("mixb_kernel", 256, 256, k2.K2_LDS))
    if "3" in which:
        import k3
        descs.append(k3.gen_k3(a)); launches.append(("outp_kernel", 256, 256, k3.K3_LDS))
    s = HEAD
    for n, g, b, l in launches:
        s += f"; @launch kernel={n} grid=({g},1,1) block=({b},1,1) lds={l}\n"
    s += '.amdgcn_target "amdgcn-amd-amdhsa--gfx950"\n.text\n' + a.text()
    s += '.section .rodata,"a"\n' + "".join(descs)
    open(path, "w").write(s)

if __name__ == "__main__":
    build(sys.argv[1], sys.argv[2])
```
